```python
import torch

def _softmax(x, axis=-1):
    return torch.softmax(x, dim=axis)
def _gelu(x):
    return torch.nn.functional.gelu(x, approximate="tanh")
def _silu(x):
    return torch.nn.functional.silu(x)
def _sigmoid(x):
    return torch.sigmoid(x)
def _layernorm(x, axis=-1, eps=1e-5):
    m = x.mean(dim=axis, keepdim=True)
    v = x.var(dim=axis, keepdim=True, unbiased=False)
    return (x - m) / torch.sqrt(v + eps)
def _scatter_add(tgt, idx, src, axis=0):
    return tgt.clone().index_add_(axis, idx, src)
def _segment_sum(src, seg, n):
    out = torch.zeros((n,) + src.shape[1:], dtype=src.dtype)
    return out.index_add_(0, seg, src)
def _pad(x, pw):
    flat = tuple(v for pair in reversed(pw) for v in pair)
    return torch.nn.functional.pad(x, flat)

kernel_name = 'parallel_sum__ssm_conv_h3__mixer_s_mlp__prompt'

def setup_inputs():

    _w = (lambda a: (lambda t: t.to(torch.bfloat16) if t.is_floating_point() else t)(torch.as_tensor(a)))
    def _A_setup():
        B, S, D = 1, 2048, 448
        ks = 4
        return {
            "q": _w((lambda *s: torch.randn(*s, dtype=torch.bfloat16) * 0.05)(B, S, D)),
            "k": _w((lambda *s: torch.randn(*s, dtype=torch.bfloat16) * 0.8)(B, S, D)),
            "v": _w((lambda *s: torch.randn(*s, dtype=torch.bfloat16) * 0.8)(B, S, D)),
            "shift_k": _w((lambda *s: torch.randn(*s, dtype=torch.bfloat16) * 0.8)(D, ks) * 0.5),
            "ssm_k": _w((lambda *s: torch.randn(*s, dtype=torch.bfloat16) * 1.6)(D, S) * (1.0 / S ** 0.5)),
            "ssm_D": _w((lambda *s: torch.randn(*s, dtype=torch.bfloat16) * 0.8)(D)),
        }
    _A_in = _A_setup()

    def _B_setup():
        B, S, D, F = 1, 2048, 448, 1792
        return {
            "x":  _w((lambda *s: torch.randn(*s, dtype=torch.bfloat16) * 0.05)(B, S, D)),
            "w1": _w((lambda *s: torch.randn(*s, dtype=torch.bfloat16) * 3.2)(D, D) * (D ** -0.5)),
            "w2": _w((lambda *s: torch.randn(*s, dtype=torch.bfloat16) * 3.2)(D, D) * (D ** -0.5)),
            "w3": _w((lambda *s: torch.randn(*s, dtype=torch.bfloat16) * 3.2)(D, F) * (D ** -0.5)),
            "w4": _w((lambda *s: torch.randn(*s, dtype=torch.bfloat16) * 1.6)(F, D) * (F ** -0.5)),
        }
    _B_in = _B_setup()

    return {
        "A_q": _A_in["q"],
        "A_k": _A_in["k"],
        "A_v": _A_in["v"],
        "A_shift_k": _A_in["shift_k"],
        "A_ssm_k": _A_in["ssm_k"],
        "A_ssm_D": _A_in["ssm_D"],
        "B_x": _B_in["x"],
        "B_w1": _B_in["w1"],
        "B_w2": _B_in["w2"],
        "B_w3": _B_in["w3"],
        "B_w4": _B_in["w4"],
    }

def reference(A_q, A_k, A_v, A_shift_k, A_ssm_k, A_ssm_D, B_x, B_w1, B_w2, B_w3, B_w4):
    def _A_ref(q, k, v, shift_k, ssm_k, ssm_D):
        B, S, D = q.shape
        ks = shift_k.shape[-1]
        k_pad = _pad(k, ((0, 0), (ks - 1, 0), (0, 0)))
        k_shift = torch.zeros_like(k)
        for t in range(ks):
            k_shift = k_shift + k_pad[:, t:t + S, :] * shift_k[:, ks - 1 - t][None, None, :]
        kv = k_shift * v
        L = 2 * S
        kv_pad = _pad(kv, ((0, 0), (0, S), (0, 0)))
        kf_pad = _pad(ssm_k, ((0, 0), (0, S)))
        kv_f = (lambda x, axes=(-2,-1): torch.fft.rfft2(x.float(), dim=axes))(kv_pad[:, None, :, :], axes=(1, 2))
        kf_f = (lambda x, axes=(-2,-1): torch.fft.rfft2(x.float(), dim=axes))(kf_pad[:, None, :], axes=(1, 2))
        kf_f = (lambda x, *d: x.permute(*d))(kf_f, 1, 2, 0)
        y_f = kv_f * kf_f[None, :, :, :]
        y = (lambda x, s, axes=(-2,-1): torch.fft.irfft2(x, s=s, dim=axes).to(torch.bfloat16))(y_f, (1, L), axes=(1, 2))[:, 0, :S, :]
        y = y + kv * ssm_D[None, None, :]
        return q * y

    def _B_ref(x, w1, w2, w3, w4):
        B, S, D = x.shape
        h = _gelu(_layernorm(x, axis=-1) @ w1)
        c = D // 4
        g0 = _pad(h[:, :, 0*c:1*c], ((0, 0), (1, 0), (0, 0)))[:, :S, :]
        g1 = _pad(h[:, :, 1*c:2*c], ((0, 0), (0, 1), (0, 0)))[:, 1:, :]
        g2 = _pad(h[:, :, 2*c:3*c], ((0, 0), (2, 0), (0, 0)))[:, :S, :]
        g3 = _pad(h[:, :, 3*c:   ], ((0, 0), (0, 2), (0, 0)))[:, 2:, :]
        hs = torch.concatenate([g0, g1, g2, g3], axis=-1) @ w2
        x1 = x + hs
        h2 = _gelu(_layernorm(x1, axis=-1) @ w3) @ w4
        return x1 + h2

    x = A_q
    xn = _layernorm(x, axis=-1)
    return x + _A_ref(xn, A_k, A_v, A_shift_k, A_ssm_k, A_ssm_D) + _B_ref(xn, B_w1, B_w2, B_w3, B_w4)
```

```python
import re
from contextlib import contextmanager

REG_RE = re.compile(r'^(-|\|)?(abs\()?([vas])(\d+|\[(\d+):(\d+)\])\)?\|?$')

def regs_of(tok):
    tok = tok.strip()
    if tok in ('vcc', 'exec'):
        return {tok}
    if tok in ('vcc_lo', 'vcc_hi'):
        return {'vcc'}
    if tok in ('exec_lo', 'exec_hi'):
        return {'exec'}
    if tok == 'm0':
        return {'m0'}
    m = REG_RE.match(tok)
    if not m:
        return set()
    kind = m.group(3)
    if m.group(5) is not None:
        return {kind + str(i) for i in range(int(m.group(5)), int(m.group(6)) + 1)}
    return {kind + m.group(4)}

TRANS = ('v_exp_f32', 'v_log_f32', 'v_rcp_f32', 'v_rsq_f32', 'v_sqrt_f32', 'v_sin_f32', 'v_cos_f32', 'v_rcp_iflag_f32')

class Inst:
    def __init__(self, text):
        self.text = text
        t = text.split(';')[0].strip()
        parts = t.split(None, 1)
        self.op = parts[0]
        rest = parts[1] if len(parts) > 1 else ''
        ops = []; depth = 0; cur = ''
        for ch in rest:
            if ch in '[(': depth += 1
            if ch in '])': depth -= 1
            if ch == ',' and depth == 0:
                ops.append(cur.strip()); cur = ''
            else:
                cur += ch
        if cur.strip(): ops.append(cur.strip())
        self.mods = ''
        if ops:
            last = ops[-1].split(None, 1)
            ops[-1] = last[0]
            if len(last) > 1: self.mods = last[1]
        self.ops = ops
        op = self.op
        self.defs = set(); self.uses = set()
        self.cls = None
        R = [regs_of(o) for o in ops]
        allr = lambda xs: set().union(*xs) if xs else set()
        self.is_dpp = '_dpp' in op or 'row_' in self.mods or 'quad_perm' in self.mods or 'wave_' in self.mods
        if op.startswith('v_mfma'):
            self.cls = 'mfma'
            self.defs = R[0]; self.A = R[1]; self.B = R[2]; self.C = R[3]; self.uses = R[1] | R[2] | R[3]
            self.passes = 8 if '32x32' in op else 4
        elif op.startswith('v_'):
            self.cls = 'valu'
            base = re.sub(r'_(e32|e64|dpp|sdwa)$', '', op)
            self.base = base
            if base.startswith('v_cmp'):
                self.defs = set(R[0]); self.uses = allr(R[1:])
                if base.startswith('v_cmpx'): self.defs.add('exec')
            elif 'permlane' in base and 'swap' in base:
                self.defs = R[0] | R[1]; self.uses = R[0] | R[1]
            elif base in ('v_add_co_u32', 'v_sub_co_u32', 'v_subrev_co_u32', 'v_addc_co_u32', 'v_subb_co_u32', 'v_mad_u64_u32'):
                self.defs = R[0] | R[1]; self.uses = allr(R[2:])
            elif base == 'v_nop':
                pass
            else:
                self.defs = set(R[0]); self.uses = allr(R[1:])
                if base in ('v_fmac_f32', 'v_dot2c_f32_bf16', 'v_writelane_b32') or self.is_dpp or 'UNUSED_PRESERVE' in self.mods:
                    self.uses |= R[0]
            self.trans = base in TRANS
            self.dot = base.startswith('v_dot')
        elif op.startswith('ds_'):
            self.cls = 'ds'
            if op.startswith('ds_read') or op.startswith('ds_bpermute') or op.startswith('ds_permute') or op.startswith('ds_swizzle') or '_rtn' in op:
                self.defs = set(R[0]); self.uses = allr(R[1:])
                if 'd16' in op: self.uses |= R[0]
            else:
                self.uses = allr(R)
        elif op.startswith('buffer_') or op.startswith('global_'):
            self.cls = 'vm'
            self.lds = (' lds' in (' ' + self.mods)) or '_lds_' in op
            self.wide_store = False
            if op in ('buffer_wbl2', 'buffer_inv'):
                pass
            elif self.lds:
                self.uses = allr(R) | {'m0'}
            elif '_load_' in op:
                self.defs = set(R[0]); self.uses = allr(R[1:])
                if 'd16' in op: self.uses |= R[0]
            elif '_atomic_' in op:
                self.uses = allr(R)
                if 'sc0' in self.mods: self.defs = set(R[0])
            else:
                self.uses = allr(R)
                self.wide_store = 'x3' in op or 'x4' in op
                self.data = R[0] if op.startswith('buffer_') else R[1]
        elif op.startswith('s_load') or op.startswith('s_buffer_load') or op in ('s_memtime', 's_memrealtime') or op.startswith('s_atomic'):
            self.cls = 'smem'
            self.defs = set(R[0]); self.uses = allr(R[1:])
        elif op.startswith('s_'):
            self.cls = 'salu'
            if op.startswith('s_cmp') or op.startswith('s_bitcmp'):
                self.uses = allr(R); self.defs = {'scc'}
            elif op in ('s_waitcnt', 's_barrier', 's_branch', 's_nop', 's_sleep', 's_setprio', 's_endpgm') or op.startswith('s_cbranch'):
                if 'vcc' in op: self.uses = {'vcc'}
            elif 'saveexec' in op:
                self.defs = R[0] | {'exec'}; self.uses = allr(R[1:]) | {'exec'}
            else:
                self.defs = set(R[0]); self.uses = allr(R[1:])
                if op in ('s_addk_i32', 's_mulk_i32', 's_cmov_b32', 's_cmov_b64', 's_bitset1_b32', 's_bitset0_b32'): self.uses |= R[0]
        else:
            raise ValueError('unknown instruction: ' + text)

def need_states(p, c):
    n = 0
    if p.cls == 'valu':
        vd = {r for r in p.defs if r[0] in 'va' and r != 'vcc'}
        sd = {r for r in p.defs if r[0] == 's' or r == 'vcc'}
        if c.cls == 'mfma':
            if vd & c.uses: n = max(n, 3 if p.dot else 2)
            if 'exec' in p.defs: n = max(n, 4)
        if c.cls == 'valu':
            if p.trans and not c.trans and (vd & c.uses): n = max(n, 1)
            if p.trans and c.trans and (vd & c.uses): n = max(n, 1)
            if sd & c.uses: n = max(n, 4 if c.base in ('v_readlane_b32', 'v_writelane_b32') else 2)
            if c.base in ('v_readlane_b32', 'v_readfirstlane_b32') and (vd & c.uses): n = max(n, 1)
            if c.is_dpp and (vd & c.uses): n = max(n, 2)
            if 'permlane' in c.base and (vd & c.uses): n = max(n, 2)
            if 'exec' in p.defs: n = max(n, 5)
            if p.dot and (vd & (c.uses | c.defs)):
                same = c.dot and c.base == p.base
                if same:
                    ab = regs_of(c.ops[1]) | regs_of(c.ops[2])
                    if vd & ab: n = max(n, 3)
                else:
                    n = max(n, 3)
            if ('dst_sel:WORD' in p.mods or 'dst_sel:BYTE' in p.mods) and (vd & (c.uses | c.defs)): n = max(n, 1)
        if c.cls in ('vm', 'ds'):
            if sd & c.uses: n = max(n, 5)
            if p.dot and (vd & c.uses): n = max(n, 3)
            if p.trans and (vd & c.uses): n = max(n, 1)
        if c.cls in ('salu', 'smem'):
            if sd & c.uses: n = max(n, 1)
    elif p.cls == 'mfma':
        big = p.passes == 8
        if c.cls == 'mfma':
            if p.defs & (c.A | c.B): n = max(n, 12 if big else 8)
            if p.defs & c.C:
                if not (p.defs == c.C and p.passes == c.passes): n = max(n, 10 if big else 6)
            elif p.defs & c.defs:
                n = max(n, 10 if big else 6)
        elif c.cls in ('valu', 'vm', 'ds'):
            if p.defs & (c.uses | c.defs): n = max(n, 12 if big else 8)
            if (p.C & c.defs): n = max(n, 7 if big else 3)
    elif p.cls == 'salu':
        if 'm0' in p.defs and c.cls == 'vm' and c.lds: n = max(n, 1)
        if 'm0' in p.defs and c.cls == 'ds' and 'addtid' in c.op: n = max(n, 1)
    elif p.cls == 'vm':
        if p.wide_store and (p.data & c.defs): n = max(n, 2)
    return n

class Gen:
    def __init__(self):
        self.out = []
        self.win = []
        self.vmq = []
        self.lgq = []
        self.nlabel = 0
        self.stats = {'nop': 0, 'wait': 0, 'n': 0}

    def raw(self, s): self.out.append(s)
    def comment(self, s): self.out.append('    ; ' + s)

    def _age(self, k):
        self.win = [(i, a + k) for (i, a) in self.win if a + k < 24]

    def _emit_wait(self, vm=None, lg=None):
        parts = []
        if vm is not None and vm < len(self.vmq):
            vm = min(vm, 63)
            parts.append('vmcnt(%d)' % vm)
            self.vmq = self.vmq[len(self.vmq) - vm:] if vm else []
        if lg is not None and lg < len(self.lgq):
            if any(o.cls == 'smem' for o in self.lgq): lg = 0
            lg = min(lg, 15)
            parts.append('lgkmcnt(%d)' % lg)
            self.lgq = self.lgq[len(self.lgq) - lg:] if lg else []
        if parts:
            self.out.append('    s_waitcnt ' + ' '.join(parts))
            self._age(1); self.stats['wait'] += 1

    def wait(self, *hs):
        vm = lg = None
        for h in hs:
            if h is None: continue
            if isinstance(h, (list, tuple)):
                self.wait(*h); continue
            for idx, o in enumerate(self.vmq):
                if o is h:
                    n = len(self.vmq) - 1 - idx; vm = n if vm is None else min(vm, n)
            for idx, o in enumerate(self.lgq):
                if o is h:
                    n = len(self.lgq) - 1 - idx; lg = n if lg is None else min(lg, n)
        self._emit_wait(vm, lg)

    def wait_vm(self, n=0, force=False):
        if force and n >= len(self.vmq):
            self.out.append('    s_waitcnt vmcnt(%d)' % n); self._age(1)
        else: self._emit_wait(vm=n)
    def wait_lg(self, n=0, force=False):
        if force and n >= len(self.lgq):
            self.out.append('    s_waitcnt lgkmcnt(%d)' % n); self._age(1)
        else: self._emit_wait(lg=n)

    def __call__(self, text):
        if '\n' in text:
            r = None
            for l in text.split('\n'):
                if l.strip(): r = self(l.strip())
            return r
        i = Inst(text)
        touched = i.uses | i.defs
        vm = lg = None
        for idx, o in enumerate(self.vmq):
            if o.defs & touched: vm = len(self.vmq) - 1 - idx
        for idx, o in enumerate(self.lgq):
            if o.defs & touched: lg = len(self.lgq) - 1 - idx
        self._emit_wait(vm, lg)
        need = 0
        for (p, a) in self.win:
            need = max(need, need_states(p, i) - a)
        while need > 0:
            k = min(need, 16)
            self.out.append('    s_nop %d' % (k - 1)); self._age(k); need -= k; self.stats['nop'] += 1
        self.out.append('    ' + text)
        self.stats['n'] += 1
        step = 1
        if i.op == 's_nop': step = int(i.ops[0]) + 1
        self._age(step)
        self.win.append((i, 0))
        if i.cls == 'vm': self.vmq.append(i)
        elif i.cls in ('ds', 'smem'): self.lgq.append(i)
        return i

    def barrier(self):
        self('s_barrier')

    def newlabel(self, base='L'):
        self.nlabel += 1
        return '%s_%d' % (base, self.nlabel)

    def label(self, name): self.out.append(name + ':')

    def snapshot(self): return (list(self.win), list(self.vmq), list(self.lgq))
    def restore(self, s): self.win, self.vmq, self.lgq = list(s[0]), list(s[1]), list(s[2])

    @contextmanager
    def skip_if(self, br):
        l = self.newlabel('Lskip')
        self('%s %s' % (br, l))
        snap = self.snapshot()
        yield
        new_vm = [o for o in self.vmq if not any(o is q for q in snap[1])]
        new_lg = [o for o in self.lgq if not any(o is q for q in snap[2])]
        pend = [o for o in new_vm + new_lg if o.defs]
        if pend: self.wait(*pend)
        if any(o.cls == 'smem' for o in self.lgq): self.wait_lg(0)
        win = self.win
        self.restore(snap)
        self.win = self.win + win
        self.label(l)

    @contextmanager
    def loop(self):
        l = self.newlabel('Lloop')
        self('s_nop 1')
        self.label(l)
        yield l

    def text(self): return '\n'.join(self.out) + '\n'

HEAD = """{launch}
.amdgcn_target "amdgcn-amd-amdhsa--gfx950"
.text
"""
def kernel_text(name, body, vgpr, accum, sgpr=102, kernarg=112):
    return f""".globl {name}
.p2align 8
.type {name},@function
{name}:
{body}
.section .rodata,"a"
.p2align 6
.amdhsa_kernel {name}
  .amdhsa_next_free_vgpr {vgpr}
  .amdhsa_next_free_sgpr {sgpr}
  .amdhsa_accum_offset {accum}
  .amdhsa_group_segment_fixed_size 0
  .amdhsa_kernarg_size {kernarg}
  .amdhsa_user_sgpr_count 2
  .amdhsa_user_sgpr_kernarg_segment_ptr 1
  .amdhsa_system_sgpr_workgroup_id_x 1
.end_amdhsa_kernel
.text
"""
```

```python
import sys, struct
sys.path.insert(0, "tools")
from asmgen import *

NAME = "parallel_sum__ssm_conv_h3__mixer_s_mlp__prompt_kernel"
S, D, F = 2048, 448, 1792
ROWB = 896
LX, LW, LC = 0, 61440, 118784
LDS_SIZE = 163840
LK, LV, LST = LC, LC + 9216, LC + 17408
HST = 4512
LH, LXR = LC, LC + 8 * HST
XRST = 4224
WS_FL = 0
FL_G, FL_X1, FL_H2A, FL_H2B, FL_KV, FL_Y, FL_E = 0, 32 * 128, 64 * 128, 96 * 128, 128 * 128, 160 * 128, 192 * 128
WS_G = 1 << 16
WS_X1 = WS_G + 32 * 56 * 1024
WS_ST = WS_X1 + 32 * 56 * 1024
WS_KV = WS_ST + 32 * 8192
WS_Y = WS_KV + 448 * 4096
WS_H2 = WS_Y + 224 * 8192
WS_TS = WS_H2 + 32 * 224 * 1024
WS_END = WS_TS + 256 * 4 * 128
sX, sK, sV, sSK, sH, sDp, sW1, sW2, sW3, sW4, sO, sWS = 4, 8, 12, 16, 20, 24, 28, 32, 36, 40, 44, 48
sW, sJ, sRB, sEP, sDD = 52, 53, 54, 55, 26
sC1, sC2 = 56, 58
sT = 60
sTS = 70
def f2u(x): return struct.unpack('<I', struct.pack('<f', x))[0]
C1 = -2.0 * 0.7978845608028654 * 1.4426950408889634
C2 = C1 * 0.044715
EPS = 1e-5

class Alloc:
    def __init__(self, kind, lo, hi):
        self.kind, self.free_ = kind, set(range(lo, hi)); self.live = {}; self.hw = 0
    def __call__(self, n, align=None):
        align = align or (2 if n > 1 else 1)
        for b in sorted(self.free_):
            if b % align == 0 and all((b + i) in self.free_ for i in range(n)):
                for i in range(n): self.free_.discard(b + i)
                self.live[b] = n; self.hw = max(self.hw, b + n)
                return b
        raise RuntimeError("out of %s registers (need %d)" % (self.kind, n))
    def free(self, *bs):
        for b in bs:
            n = self.live.pop(b)
            for i in range(n): self.free_.add(b + i)

def vr(b, n=1): return f"v{b}" if n == 1 else f"v[{b}:{b+n-1}]"
def ar(b, n=1): return f"a{b}" if n == 1 else f"a[{b}:{b+n-1}]"
def sr(b, n=1): return f"s{b}" if n == 1 else f"s[{b}:{b+n-1}]"

def build(ts=False):
    g = Gen()
    va = Alloc('v', 1, 256)
    nts = [0]
    def stamp(name):
        if not ts: return
        assert nts[0] < 15
        g(f"s_memrealtime {sr(sTS + 2 * nts[0], 2)}"); g.wait_lg(0)
        STAMPS.append(name); nts[0] += 1
    STAMPS.clear()

    g("s_cmp_ge_u32 s2, 256"); g("s_cbranch_scc1 L_exit")
    for (sreg, off) in ((sK, 8), (sV, 16), (sX, 0), (sW1, 56), (sWS, 104), (sSK, 24), (sH, 32), (sDp, 40), (sW2, 64), (sW3, 72), (sW4, 80), (sO, 88)):
        g(f"s_load_dwordx2 {sr(sreg, 2)}, s[0:1], {off}")
    for (sreg, n) in ((sK, 68 * ROWB), (sV, S * ROWB), (sW1, D * ROWB), (sWS, WS_END), (sSK, D * 8), (sH, 4096), (sW2, D * ROWB), (sW3, D * F * 2), (sW4, F * ROWB), (sO, S * ROWB)):
        g(f"s_mov_b32 s{sreg+2}, {n}"); g(f"s_mov_b32 s{sreg+3}, 0x20000")
    g(f"s_mov_b32 s{sX+3}, 0x20000")
    t = va(1)
    g(f"v_lshrrev_b32 {vr(t)}, 6, v0"); g("v_and_b32 v0, 63, v0"); g(f"v_readfirstlane_b32 s{sW}, {vr(t)}")
    va.free(t)
    g(f"s_lshr_b32 s{sT}, s2, 3")
    g(f"s_cmp_ge_u32 s{sT}, 28"); g("s_cbranch_scc1 L_spare")
    spare_snap = g.snapshot()
    g(f"s_mul_i32 s{sT+1}, s{sT}, 37"); g(f"s_lshr_b32 s{sT+1}, s{sT+1}, 8")
    g(f"s_mul_i32 s{sT+2}, s{sT+1}, 7"); g(f"s_sub_u32 s{sJ}, s{sT}, s{sT+2}")
    g(f"s_and_b32 s{sT+2}, s2, 7"); g(f"s_lshl_b32 s{sT+2}, s{sT+2}, 2"); g(f"s_add_u32 s{sRB}, s{sT+2}, s{sT+1}")
    stamp("start")
    vL16 = va(1); vN16 = va(1); vKG = va(1); vHI = va(1); vRHO = va(1); vR8 = va(1); vC8 = va(1)
    g(f"v_lshlrev_b32 {vr(vL16)}, 4, v0")
    g(f"v_and_b32 {vr(vN16)}, 15, v0"); g(f"v_lshrrev_b32 {vr(vKG)}, 4, v0"); g(f"v_lshrrev_b32 {vr(vHI)}, 5, v0")
    g(f"v_lshrrev_b32 {vr(vR8)}, 3, v0"); g(f"v_and_b32 {vr(vC8)}, 7, v0")
    g(f"s_mul_i32 s{sT}, s{sRB}, {64 * ROWB}")
    g(f"s_lshl_b32 s{sT+1}, s{sJ}, 7")
    g(f"s_add_u32 s{sT+2}, s{sT}, s{sT+1}")
    g(f"s_add_u32 s{sK}, s{sK}, s{sT+2}"); g(f"s_addc_u32 s{sK+1}, s{sK+1}, 0")
    g(f"s_sub_u32 s{sK}, s{sK}, {4 * ROWB}"); g(f"s_subb_u32 s{sK+1}, s{sK+1}, 0")
    g(f"s_add_u32 s{sX}, s{sX}, s{sT}"); g(f"s_addc_u32 s{sX+1}, s{sX+1}, 0")
    g(f"s_sub_u32 s{sX}, s{sX}, {2 * ROWB}"); g(f"s_subb_u32 s{sX+1}, s{sX+1}, 0")
    g(f"s_sub_u32 s{sT+3}, {(S + 2) * ROWB}, s{sT}"); g(f"s_min_u32 s{sX+2}, s{sT+3}, {68 * ROWB}")

    vT16 = va(1); t = va(1); t2 = va(1)
    g(f"v_and_b32 {vr(t)}, 2, {vr(vR8)}")
    g(f"s_and_b32 s{sT+4}, s{sW}, 1"); g(f"s_lshl_b32 s{sT+4}, s{sT+4}, 2")
    g(f"v_xor_b32 {vr(t)}, {vr(t)}, {vr(vC8)}"); g(f"v_xor_b32 {vr(t)}, s{sT+4}, {vr(t)}")
    g(f"v_mul_u32_u24 {vr(t2)}, {ROWB}, {vr(vR8)}")
    g(f"v_lshl_add_u32 {vr(vT16)}, {vr(t)}, 4, {vr(t2)}")
    g(f"s_or_b32 s{sT+5}, s{sRB}, s{sW}"); g(f"s_cmp_eq_u32 s{sT+5}, 0"); g(f"s_cselect_b32 s{sT+5}, 32, 0")
    g(f"v_cmp_gt_u32 vcc, s{sT+5}, v0"); g(f"v_mov_b32 {vr(t2)}, 0x80000000")
    g(f"v_cndmask_b32 {vr(t)}, {vr(vT16)}, {vr(t2)}, vcc")
    g(f"s_mul_i32 s{sT+6}, s{sW}, {8 * ROWB}")
    g(f"s_lshl_b32 s{sT+7}, s{sW}, 10")
    hk = []
    g(f"s_add_u32 m0, s{sT+7}, {LK}")
    hk.append(g(f"buffer_load_dwordx4 {vr(t)}, {sr(sK,4)}, s{sT+6} offen lds"))
    g(f"s_add_u32 m0, s{sT+7}, {LK + 4096}"); g(f"s_add_u32 s{sT+8}, s{sT+6}, {32 * ROWB}")
    hk.append(g(f"buffer_load_dwordx4 {vr(vT16)}, {sr(sK,4)}, s{sT+8} offen lds"))
    g(f"s_cmp_eq_u32 s{sW}, 0")
    with g.skip_if("s_cbranch_scc0"):
        g(f"s_mov_b32 m0, {LK + 8192}"); g(f"s_mov_b32 s{sT+8}, {64 * ROWB}")
        g(f"buffer_load_dwordx4 {vr(vT16)}, {sr(sK,4)}, s{sT+8} offen lds")
    for i in range(2):
        g(f"s_add_u32 m0, s{sT+7}, {LV + 4096 * i}"); g(f"s_add_u32 s{sT+8}, s{sT+6}, s{sT+2}")
        if i: g(f"s_add_u32 s{sT+8}, s{sT+8}, {32 * ROWB}")
        hk.append(g(f"buffer_load_dwordx4 {vr(vT16)}, {sr(sV,4)}, s{sT+8} offen lds"))
    vSK = va(2); vEP = va(1)
    g(f"s_lshl_b32 s{sT+8}, s{sJ}, 9"); g(f"s_lshl_b32 s{sT+9}, s{sW}, 7"); g(f"s_add_u32 s{sT+8}, s{sT+8}, s{sT+9}")
    g(f"v_lshlrev_b32 {vr(t)}, 3, {vr(vN16)}")
    g(f"buffer_load_dwordx2 {vr(vSK,2)}, {vr(t)}, {sr(sSK,4)}, s{sT+8} offen")
    g(f"v_mov_b32 {vr(t2)}, {FL_E}")
    hk.append(g(f"buffer_load_dword {vr(vEP)}, {vr(t2)}, {sr(sWS,4)}, 0 offen sc1"))
    vXe = va(1); vXo = va(1)
    g(f"s_mul_i32 s{sT+8}, s{sW}, 119")
    g(f"v_add_u32 {vr(t)}, s{sT+8}, {vr(vR8)}")
    g(f"v_bfe_u32 {vr(t2)}, {vr(t)}, 1, 3"); g(f"v_xor_b32 {vr(t2)}, {vr(t2)}, {vr(vC8)}")
    g(f"v_lshlrev_b32 {vr(t)}, 7, {vr(t)}")
    g(f"v_lshl_add_u32 {vr(vXe)}, {vr(t2)}, 4, {vr(t)}")
    g(f"v_xor_b32 {vr(vXo)}, 64, {vr(vXe)}")
    t3 = va(1)
    g(f"s_lshl_b32 s{sT+5}, s{sT+5}, 1")
    g(f"v_mov_b32 {vr(t3)}, 0x80000000")
    g(f"v_cmp_gt_u32 vcc, s{sT+5}, v0"); g(f"v_cndmask_b32 {vr(t)}, {vr(vXe)}, {vr(t3)}, vcc")
    g(f"s_min_u32 s{sT+5}, s{sT+5}, 48")
    g(f"v_cmp_gt_u32 vcc, s{sT+5}, v0"); g(f"v_cndmask_b32 {vr(t2)}, {vr(vXo)}, {vr(t3)}, vcc")
    g(f"s_lshl_b32 s{sT+8}, s{sT+8}, 7")
    hx = []
    for I in range(15):
        if I % 4 == 0:
            g(f"s_add_u32 m0, s{sT+8}, {LX + I * 1024}"); g(f"s_mov_b32 s{sT+9}, {I * 1024}")
        src = (t, t2)[I] if I < 2 else (vXe, vXo)[I & 1]
        if I == 14: g(f"s_mov_b32 exec_hi, 0x00ffffff")
        hx.append(g(f"buffer_load_dwordx4 {vr(src)}, {sr(sX,4)}, s{sT+9} offen offset:{(I % 4) * 1024} lds"))
        if I == 14: g(f"s_mov_b32 exec_hi, -1")
    va.free(vXe, vXo, t3)
    hw1 = []
    g(f"s_add_u32 s{sT+8}, s{sT+6}, s{sT+1}")
    for i in range(14):
        g(f"s_add_u32 m0, s{sT+7}, {LW + 4096 * i}")
        if i: g(f"s_add_u32 s{sT+8}, s{sT+8}, {32 * ROWB}")
        hw1.append(g(f"buffer_load_dwordx4 {vr(vT16)}, {sr(sW1,4)}, s{sT+8} offen lds"))
    va.free(vT16)
    stamp("issued")
    g(f"s_mov_b32 s{sC1}, {hex(f2u(C1))}"); g(f"s_mov_b32 s{sC1+1}, {hex(f2u(C1))}")
    g(f"s_mov_b32 s{sC2}, {hex(f2u(C2))}"); g(f"s_mov_b32 s{sC2+1}, {hex(f2u(C2))}")
    g(f"s_lshl_b32 s{sT}, s{sJ}, 5"); g(f"s_add_u32 s{sT}, s{sT}, s{sRB}")
    g(f"s_lshl_b32 s{sT+1}, s{sT}, 2")
    g(f"s_load_dword s{sDD}, {sr(sDp,2)}, s{sT+1}")
    g(f"s_lshl_b32 s{sT}, s{sT}, 1"); g(f"s_lshr_b32 s{sT+1}, s{sW}, 1"); g(f"s_add_u32 s{sT}, s{sT}, s{sT+1}")
    g(f"s_lshl_b32 s{sT}, s{sT}, 12")
    g(f"s_add_u32 s{sH}, s{sH}, s{sT}"); g(f"s_addc_u32 s{sH+1}, s{sH+1}, 0")
    g(f"v_lshlrev_b32 {vr(vRHO)}, 1, {vr(vN16)}")
    g(f"v_subrev_u32 {vr(t)}, 7, {vr(vRHO)}"); g(f"v_cmp_lt_u32 vcc, 3, {vr(vN16)}")
    g(f"v_subrev_u32 {vr(t2)}, 16, {vr(vRHO)}")
    g(f"v_cndmask_b32 {vr(vRHO)}, {vr(vRHO)}, {vr(t)}, vcc")
    g(f"v_cmp_lt_u32 vcc, 11, {vr(vN16)}"); g(f"v_cndmask_b32 {vr(vRHO)}, {vr(vRHO)}, {vr(t2)}, vcc")
    vTR16 = va(1)
    g(f"v_lshrrev_b32 {vr(t)}, 3, {vr(vN16)}")
    g(f"v_and_b32 {vr(t2)}, 1, {vr(vKG)}"); g(f"v_lshl_add_u32 {vr(t)}, {vr(t2)}, 1, {vr(t)}")
    g(f"v_xor_b32 {vr(t)}, s{sW}, {vr(t)}"); g(f"v_lshlrev_b32 {vr(t)}, 5, {vr(t)}")
    g(f"v_and_b32 {vr(t2)}, 3, v0"); g(f"v_lshl_add_u32 {vr(t)}, {vr(t2)}, 3, {vr(t)}")
    g(f"v_lshrrev_b32 {vr(t2)}, 2, {vr(vN16)}"); g(f"v_lshl_add_u32 {vr(t)}, {vr(t2)}, 7, {vr(t)}")
    g(f"v_lshl_add_u32 {vr(vTR16)}, {vr(vKG)}, 10, {vr(t)}")
    vONE = va(4)
    for i in range(4): g(f"v_mov_b32 {vr(vONE+i)}, 0x3f803f80")

    g.wait(hk); g.barrier()
    g(f"v_readfirstlane_b32 s{sEP}, {vr(vEP)}")
    g(f"s_mul_i32 s{sEP}, s{sEP}, 0x9e3779b1"); g(f"s_add_u32 s{sEP}, s{sEP}, 0x7f4a7c15")
    g(f"v_mov_b32 {vr(vEP)}, s{sEP}")
    vA0 = va(1); vA1 = va(1)
    g(f"v_add_u32 {vr(vA0)}, {LC}, {vr(vTR16)}"); g(f"v_xor_b32 {vr(vA1)}, 64, {vr(vA0)}")
    kr = va(12); vv = va(8)
    for th in range(2):
        g(f"ds_read_b64_tr_b16 {vr(kr+6*th,2)}, {vr(vA0)} offset:{4096*th}")
        g(f"ds_read_b64_tr_b16 {vr(kr+6*th+2,2)}, {vr(vA0)} offset:{4096*th+512}")
        g(f"ds_read_b64_tr_b16 {vr(kr+6*th+4,2)}, {vr(vA1)} offset:{4096*th+1024}")
        g(f"ds_read_b64_tr_b16 {vr(vv+4*th,2)}, {vr(vA0)} offset:{LV-LK+4096*th}")
        g(f"ds_read_b64_tr_b16 {vr(vv+4*th+2,2)}, {vr(vA0)} offset:{LV-LK+4096*th+512}")
    va.free(vA0, vA1)
    tap = va(4)
    g(f"v_lshlrev_b32 {vr(tap)}, 16, {vr(vSK)}"); g(f"v_and_b32 {vr(tap+1)}, 0xffff0000, {vr(vSK)}")
    g(f"v_lshlrev_b32 {vr(tap+2)}, 16, {vr(vSK+1)}"); g(f"v_and_b32 {vr(tap+3)}, 0xffff0000, {vr(vSK+1)}")
    va.free(vSK)
    vKA = va(1)
    g(f"v_lshlrev_b32 {vr(t)}, 12, {vr(vN16)}"); g(f"v_lshlrev_b32 {vr(t2)}, 4, {vr(vKG)}")
    g(f"v_sub_u32 {vr(vKA)}, {vr(t)}, {vr(t2)}"); g(f"v_add_u32 {vr(vKA)}, 48, {vr(vKA)}")
    g(f"s_lshl_b32 s{sT}, s{sJ}, 2"); g(f"s_add_u32 s{sT}, s{sT}, s{sW}"); g(f"s_lshl_b32 s{sT}, s{sT}, 16")
    g(f"s_lshl_b32 s{sT+1}, s{sRB}, 7"); g(f"s_sub_u32 s{sT}, s{sT}, s{sT+1}"); g(f"s_add_u32 s{sT}, s{sT}, {WS_KV + 4080 - 48 - 64}")
    kf = va(12); vf = va(8); kvo = va(8)
    hkv = []
    for th in range(2):
        for i in range(6):
            if i: g(f"v_lshlrev_b32 {vr(kf+2*i)}, 16, {vr(kr+6*th+i)}")
            g(f"v_and_b32 {vr(kf+2*i+1)}, 0xffff0000, {vr(kr+6*th+i)}")
        for i in range(4):
            g(f"v_lshlrev_b32 {vr(vf+2*i)}, 16, {vr(vv+4*th+i)}"); g(f"v_and_b32 {vr(vf+2*i+1)}, 0xffff0000, {vr(vv+4*th+i)}")
        for e in range(7, -1, -1):
            g(f"v_mul_f32 {vr(kf+4+e)}, {vr(tap)}, {vr(kf+4+e)}")
            for d in range(1, 4): g(f"v_fmac_f32 {vr(kf+4+e)}, {vr(tap+d)}, {vr(kf+4+e-d)}")
            g(f"v_mul_f32 {vr(vf+e)}, {vr(vf+e)}, {vr(kf+4+e)}")
        for i in range(4): g(f"v_cvt_pk_bf16_f32 {vr(kvo+4*th+i)}, {vr(vf+7-2*i)}, {vr(vf+6-2*i)}")
        hkv.append(g(f"buffer_store_dwordx4 {vr(kvo+4*th,4)}, {vr(vKA)}, {sr(sWS,4)}, s{sT} offen offset:{64*(1-th)} sc1"))
    va.free(kr, vv, tap, vKA, kf, vf, kvo)
    stamp("kv")

    g.wait(hx)
    vA0 = va(1); vA1 = va(1); vrow = va(1)
    g(f"s_mul_i32 s{sT}, s{sW}, 17")
    g(f"v_add_u32 {vr(vrow)}, s{sT}, {vr(vRHO)}")
    g(f"v_bfe_u32 {vr(t)}, {vr(vrow)}, 1, 3"); g(f"v_xor_b32 {vr(t)}, {vr(t)}, {vr(vKG)}")
    g(f"v_mul_u32_u24 {vr(t2)}, {ROWB}, {vr(vrow)}"); g(f"v_lshl_add_u32 {vr(vA0)}, {vr(t)}, 4, {vr(t2)}")
    g(f"v_xor_b32 {vr(vA1)}, 64, {vr(vA0)}")
    fr = va(56); hr = va(4)
    g(f"s_add_u32 s{sT+1}, s{sT}, 16"); g(f"s_mul_i32 s{sT+2}, s{sT+1}, {ROWB}")
    g(f"v_add_u32 {vr(t)}, s{sT+2}, {vr(vL16)}")
    g(f"ds_read_b128 {vr(hr,4)}, {vr(t)} offset:{LX}")
    for s in range(14):
        g(f"ds_read_b128 {vr(fr+4*s,4)}, {vr((vA0,vA1)[s&1])} offset:{LX + 128*(s>>1)}")
    s1 = va(4); s2 = va(4); h1 = va(1); h2 = va(1)
    g(f"v_mov_b32 {vr(h1)}, 0"); g(f"v_mov_b32 {vr(h2)}, 0")
    for i in range(4):
        g(f"v_dot2_f32_bf16 {vr(h1)}, {vr(hr+i)}, {vr(vONE)}, {vr(h1)}"); g(f"v_dot2_f32_bf16 {vr(h2)}, {vr(hr+i)}, {vr(hr+i)}, {vr(h2)}")
    g(f"v_cmp_gt_u32 vcc, 56, v0")
    g(f"v_cndmask_b32 {vr(h1)}, 0, {vr(h1)}, vcc"); g(f"v_cndmask_b32 {vr(h2)}, 0, {vr(h2)}, vcc")
    red = []
    for r in (8, 4, 2, 1):
        for h in (h1, h2): red.append(f"v_add_f32_dpp {vr(h)}, {vr(h)}, {vr(h)} row_ror:{r} row_mask:0xf bank_mask:0xf")
    for sw in ("v_permlane16_swap_b32", "v_permlane32_swap_b32"):
        red += [f"v_mov_b32 {vr(t)}, {vr(h1)}", f"v_mov_b32 {vr(t2)}, {vr(h2)}", f"{sw} {vr(t)}, {vr(h1)}", f"{sw} {vr(t2)}, {vr(h2)}",
                f"v_add_f32 {vr(h1)}, {vr(h1)}, {vr(t)}", f"v_add_f32 {vr(h2)}, {vr(h2)}, {vr(t2)}"]
    for s in range(14):
        g(f"v_mfma_f32_16x16x32_bf16 {vr(s1,4)}, {vr(vONE,4)}, {vr(fr+4*s,4)}, {vr(s1,4) if s else 0}")
        if red: g(red.pop(0))
        g(f"v_mfma_f32_16x16x32_bf16 {vr(s2,4)}, {vr(fr+4*s,4)}, {vr(fr+4*s,4)}, {vr(s2,4) if s else 0}")
        if red: g(red.pop(0))
    assert not red
    va.free(fr, hr, vA0, vA1)
    g(f"v_and_b32 {vr(t)}, 3, v0")
    for r in range(1, 4):
        g(f"v_cmp_eq_u32 vcc, {r}, {vr(t)}"); g(f"v_cndmask_b32 {vr(s2)}, {vr(s2)}, {vr(s2+r)}, vcc")
    g(f"v_cmp_eq_u32 vcc, 4, v0")
    g(f"v_mov_b32 {vr(t)}, s{sT+1}")
    g(f"v_cndmask_b32 {vr(s1)}, {vr(s1)}, {vr(h1)}, vcc"); g(f"v_cndmask_b32 {vr(s2)}, {vr(s2)}, {vr(h2)}, vcc")
    g(f"v_cndmask_b32 {vr(vrow)}, {vr(vrow)}, {vr(t)}, vcc")
    st = va(4)
    g(f"v_mul_f32 {vr(st)}, {hex(f2u(1.0/D))}, {vr(s1)}")
    g(f"v_mul_f32 {vr(t)}, {hex(f2u(1.0/D))}, {vr(s2)}")
    g(f"v_fma_f32 {vr(t)}, -{vr(st)}, {vr(st)}, {vr(t)}"); g(f"v_max_f32 {vr(t)}, 0, {vr(t)}")
    g(f"v_add_f32 {vr(t2)}, {hex(f2u(EPS))}, {vr(t)}"); g(f"v_rsq_f32 {vr(st+3)}, {vr(t2)}")
    g(f"v_mov_b32 {vr(st+2)}, {vr(st)}")
    g(f"v_mul_f32 {vr(t)}, {vr(t)}, {vr(st+3)}"); g(f"v_mul_f32 {vr(t)}, {vr(t)}, {vr(st+3)}")
    g(f"v_add_f32 {vr(t)}, {hex(f2u(EPS))}, {vr(t)}"); g(f"v_rsq_f32 {vr(t)}, {vr(t)}")
    g(f"v_lshlrev_b32 {vr(vrow)}, 4, {vr(vrow)}")
    g(f"v_mul_f32 {vr(st+1)}, {vr(t)}, {vr(st+3)}")
    g(f"v_add_u32 {vr(vrow)}, {LST}, {vr(vrow)}")
    g("s_mov_b32 exec_lo, 0x00f0001f"); g("s_mov_b32 exec_hi, 0xf0000f00")
    g(f"ds_write_b128 {vr(vrow)}, {vr(st,4)}")
    g("s_mov_b64 exec, -1")
    va.free(s1, s2, h1, h2, st, vrow)
    g(f"s_lshl_b32 s{sT}, s{sJ}, 2"); g(f"s_add_u32 s{sT}, s{sT}, s{sW}")
    g(f"s_mul_i32 s{sT}, s{sT}, 37"); g(f"s_lshr_b32 s{sT}, s{sT}, 8")
    g(f"s_lshl_b32 s{sT}, s{sT}, 2"); g(f"s_lshr_b32 s{sT}, 0x4031, s{sT}"); g(f"s_and_b32 s{sT}, s{sT}, 15")
    vrow = va(1); xa = va(14)
    g(f"v_add_u32 {vr(vrow)}, s{sT}, {vr(vRHO)}")
    g(f"v_mul_u32_u24 {vr(t)}, 7, {vr(vrow)}")
    for L in range(7):
        if L: g(f"v_add_u32 {vr(t)}, 1, {vr(t)}")
        g(f"v_bfe_u32 {vr(t2)}, {vr(t)}, 1, 3"); g(f"v_xor_b32 {vr(t2)}, {vr(t2)}, {vr(vKG)}"); g(f"v_lshlrev_b32 {vr(t2)}, 4, {vr(t2)}")
        g(f"v_lshl_add_u32 {vr(xa+2*L)}, {vr(t)}, 7, {vr(t2)}"); g(f"v_xor_b32 {vr(xa+2*L+1)}, 64, {vr(xa+2*L)}")
    g(f"v_lshlrev_b32 {vr(vrow)}, 4, {vr(vrow)}"); g(f"v_add_u32 {vr(vrow)}, {LST}, {vr(vrow)}")
    g(f"v_add_u32 {vr(vTR16)}, {LW}, {vr(vTR16)}")
    stamp("stats")
    g.wait(hw1); g.wait_lg(0); g.barrier()
    stamp("B1")

    def flag(off_expr_sreg, handles):
        g.wait(handles)
        g("s_mov_b64 exec, 1")
        g(f"buffer_store_dword {vr(vEP)}, off, {sr(sWS,4)}, s{off_expr_sreg} sc1")
        g("s_mov_b64 exec, -1")
    def poll(off_sreg, mask_lo_sreg):
        pv = va(1); pa = va(1)
        g(f"v_and_b32 {vr(pa)}, 31, v0"); g(f"v_lshlrev_b32 {vr(pa)}, 2, {vr(pa)}")
        g(f"s_mov_b32 s{sT+9}, 0")
        with g.loop() as l:
            g(f"buffer_load_dword {vr(pv)}, {vr(pa)}, {sr(sWS,4)}, s{off_sreg} offen sc1")
            g(f"s_add_u32 s{sT+9}, s{sT+9}, 1")
            g(f"v_cmp_ne_u32 vcc, s{sEP}, {vr(pv)}")
            g(f"s_and_b32 s{sT+8}, vcc_lo, s{mask_lo_sreg}")
            g(f"s_cselect_b32 s{sT+8}, s{sT+9}, 0x40000")
            g(f"s_cmp_lt_u32 s{sT+8}, 0x40000")
            g(f"s_cbranch_scc1 {l}")
        va.free(pv, pa)

    g(f"s_lshl_b32 s{sT}, s{sJ}, 2"); g(f"s_add_u32 s{sT}, s{sT}, s{sW}"); g(f"s_lshl_b32 s{sT}, s{sT}, 7")
    g(f"s_lshl_b32 s{sT+1}, s{sRB}, 2"); g(f"s_add_u32 s{sT}, s{sT}, s{sT+1}"); g(f"s_add_u32 s{sT}, s{sT}, {FL_KV}")
    flag(sT, hkv)

    w1r = va(56); acc = va(16); cs = va(4); fb = va(32); stt = va(8)
    for s in range(14):
        g(f"ds_read_b64_tr_b16 {vr(w1r+4*s,2)}, {vr(vTR16)} offset:{4096*s}")
        g(f"ds_read_b64_tr_b16 {vr(w1r+4*s+2,2)}, {vr(vTR16)} offset:{4096*s+512}")
    def rdx(i):
        s, T = divmod(i, 4)
        g(f"ds_read_b128 {vr(fb+4*(i%8),4)}, {vr(xa+s)} offset:{LX + 16*ROWB*T}")
    for i in range(7): rdx(i)
    for s in range(14):
        g(f"v_mfma_f32_16x16x32_bf16 {vr(cs,4)}, {vr(w1r+4*s,4)}, {vr(vONE,4)}, {vr(cs,4) if s else 0}")
        for T in range(4):
            i = 4 * s + T
            if i + 7 < 56: rdx(i + 7)
            g(f"v_mfma_f32_16x16x32_bf16 {vr(acc+4*T,4)}, {vr(w1r+4*s,4)}, {vr(fb+4*(i%8),4)}, {vr(acc+4*T,4) if s else 0}")
    for T in range(4): g(f"ds_read_b64 {vr(stt+2*T,2)}, {vr(vrow)} offset:{256*T}")
    va.free(w1r, fb, xa, vrow, vTR16)
    vTOK = va(1)
    g(f"v_and_b32 {vr(t)}, 16, v0"); g(f"v_add_u32 {vr(vTOK)}, {vr(t)}, {vr(vRHO)}")
    xg = va(8); xgs = va(2); xf = va(8); xfs = va(4); t3 = va(1); t4 = va(1)
    g(f"v_add_u32 {vr(t)}, 2, {vr(vTOK)}")
    g(f"v_lshlrev_b32 {vr(t4)}, 4, {vr(t)}"); g(f"v_add_u32 {vr(t4)}, {LST + 8}, {vr(t4)}")
    g(f"v_mul_u32_u24 {vr(t)}, 7, {vr(t)}"); g(f"v_add_u32 {vr(t)}, s{sJ}, {vr(t)}")
    g(f"v_bfe_u32 {vr(t2)}, {vr(t)}, 1, 3"); g(f"v_lshlrev_b32 {vr(t2)}, 4, {vr(t2)}")
    g(f"v_lshl_add_u32 {vr(t)}, {vr(t)}, 7, {vr(t2)}"); g(f"v_lshl_add_u32 {vr(t)}, {vr(vHI)}, 3, {vr(t)}")
    g(f"s_lshl_b32 s{sT}, s{sW}, 5")
    g(f"v_xor_b32 {vr(t2)}, s{sT}, {vr(t)}"); g(f"v_xor_b32 {vr(t3)}, 16, {vr(t2)}")
    for tt in range(2):
        g(f"ds_read_b64 {vr(xf+4*tt,2)}, {vr(t2)} offset:{LX + 32*ROWB*tt}")
        g(f"ds_read_b64 {vr(xf+4*tt+2,2)}, {vr(t3)} offset:{LX + 32*ROWB*tt}")
        g(f"ds_read_b64 {vr(xfs+2*tt,2)}, {vr(t4)} offset:{512*tt}")
    g(f"s_lshr_b32 s{sT}, s{sW}, 1"); g(f"s_mul_i32 s{sT+1}, s{sT}, {32*ROWB}"); g(f"s_lshl_b32 s{sT}, s{sT}, 9")
    g(f"s_and_b32 s{sT+2}, s{sW}, 1"); g(f"s_lshl_b32 s{sT+2}, s{sT+2}, 6")
    g(f"v_add_u32 {vr(t4)}, s{sT}, {vr(t4)}")
    g(f"v_xor_b32 {vr(t)}, s{sT+2}, {vr(t)}"); g(f"v_add_u32 {vr(t)}, s{sT+1}, {vr(t)}")
    g(f"ds_read_b64 {vr(xgs,2)}, {vr(t4)}")
    for a in range(4):
        g(f"v_xor_b32 {vr(t2)}, {16*a}, {vr(t)}")
        g(f"ds_read_b64 {vr(xg+2*a,2)}, {vr(t2)} offset:{LX}")
    va.free(t3, t4)
    g.wait_lg(0); g.barrier()
    stamp("G1mm")

    vC2 = va(2)
    g(f"v_mov_b32 {vr(vC2)}, s{sC2}"); g(f"v_mov_b32 {vr(vC2+1)}, s{sC2}")
    def gelu_pk(z, n, out):
        u = va(n)
        for i in range(0, n, 2): g(f"v_pk_mul_f32 {vr(u+i,2)}, {vr(z+i,2)}, {vr(z+i,2)}")
        for i in range(0, n, 2): g(f"v_pk_fma_f32 {vr(u+i,2)}, {vr(u+i,2)}, {vr(vC2,2)}, {sr(sC1,2)}")
        for i in range(0, n, 2): g(f"v_pk_mul_f32 {vr(u+i,2)}, {vr(u+i,2)}, {vr(z+i,2)}")
        for i in range(n): g(f"v_exp_f32 {vr(u+i)}, {vr(u+i)}")
        for i in range(0, n, 2): g(f"v_pk_add_f32 {vr(u+i,2)}, {vr(u+i,2)}, 1.0 op_sel_hi:[1,0]")
        for i in range(n): g(f"v_rcp_f32 {vr(u+i)}, {vr(u+i)}")
        for i in range(0, n, 2): g(f"v_pk_mul_f32 {vr(u+i,2)}, {vr(u+i,2)}, {vr(z+i,2)}")
        for i in range(0, n, 2): g(f"v_cvt_pk_bf16_f32 {vr(out+i//2)}, {vr(u+i)}, {vr(u+i+1)}")
        va.free(u)
    for T in range(4):
        for i in range(0, 4, 2):
            g(f"v_pk_fma_f32 {vr(acc+4*T+i,2)}, {vr(cs+i,2)}, {vr(stt+2*T,2)}, {vr(acc+4*T+i,2)} op_sel_hi:[1,0,1] neg_lo:[0,1,0] neg_hi:[0,1,0]")
    for T in range(4):
        for i in range(0, 4, 2):
            g(f"v_pk_mul_f32 {vr(acc+4*T+i,2)}, {vr(acc+4*T+i,2)}, {vr(stt+2*T,2)} op_sel:[0,1] op_sel_hi:[1,1]")
    go = va(8)
    gelu_pk(acc, 16, go)
    va.free(acc, cs, stt)
    for tt in range(2):
        for i in range(2): g(f"v_permlane16_swap_b32 {vr(go+4*tt+i)}, {vr(go+4*tt+2+i)}")
    g(f"s_mul_i32 s{sT}, s{sRB}, 28"); g(f"s_lshl_b32 s{sT+1}, s{sJ}, 2"); g(f"s_add_u32 s{sT+1}, s{sT+1}, s{sW}")
    g(f"s_add_u32 s{sT}, s{sT}, s{sT+1}"); g(f"s_lshl_b32 s{sT}, s{sT}, 11"); g(f"s_add_u32 s{sT}, s{sT}, {WS_G}")
    hg = [g(f"buffer_store_dwordx4 {vr(go+4*tt,4)}, {vr(vL16)}, {sr(sWS,4)}, s{sT} offen offset:{1024*tt} sc1") for tt in range(2)]
    sFL = 27
    g(f"s_lshl_b32 s{sT+1}, s{sT+1}, 2"); g(f"s_lshl_b32 s{sFL}, s{sRB}, 7"); g(f"s_add_u32 s{sFL}, s{sFL}, s{sT+1}")
    flag(sFL, hg)
    va.free(go)
    stamp("gflag")

    vT32 = va(1)
    g(f"v_and_b32 {vr(t)}, 2, {vr(vR8)}"); g(f"v_lshlrev_b32 {vr(t)}, 1, {vr(t)}"); g(f"v_xor_b32 {vr(t)}, {vr(t)}, {vr(vC8)}")
    g(f"v_lshlrev_b32 {vr(t)}, 4, {vr(t)}")
    vT32w3 = va(1)
    g(f"v_mul_u32_u24 {vr(t2)}, {ROWB}, {vr(vR8)}"); g(f"v_add_u32 {vr(vT32)}, {vr(t)}, {vr(t2)}")
    g(f"v_lshl_add_u32 {vr(vT32w3)}, {vr(t2)}, 2, {vr(t)}")
    g(f"s_mul_i32 s{sT}, s{sW}, {8*ROWB}"); g(f"s_lshl_b32 s{sT+1}, s{sJ}, 7"); g(f"s_add_u32 s{sT}, s{sT}, s{sT+1}")
    g(f"s_lshl_b32 s{sT+7}, s{sW}, 10")
    hw2 = []
    for i in range(14):
        g(f"s_add_u32 m0, s{sT+7}, {LX + 4096*i}")
        if i: g(f"s_add_u32 s{sT}, s{sT}, {32*ROWB}")
        hw2.append(g(f"buffer_load_dwordx4 {vr(vT32)}, {sr(sW2,4)}, s{sT} offen lds"))
    g(f"s_mul_i32 s{sT+2}, s{sW}, {2*HST}")
    g(f"s_and_b32 s{sT+3}, s{sW}, 1"); g(f"s_lshl_b32 s{sT+3}, s{sT+3}, 2")
    hh = []
    for e in range(2):
        g(f"s_add_u32 m0, s{sT+2}, {LH + e*HST + 400}"); g(f"s_add_u32 s{sT+4}, s{sT+3}, {10 + 2*e}")
        for i in range(4):
            hh.append(g(f"buffer_load_dwordx4 {vr(vL16)}, {sr(sH,4)}, s{sT+4} offen offset:{1024*i} lds"))
    hd = va(1); zz = va(4)
    g(f"v_and_b32 {vr(t)}, 31, v0"); g(f"v_add_u32 {vr(t2)}, {vr(t)}, {vr(vHI)}"); g(f"v_lshlrev_b32 {vr(t2)}, 1, {vr(t2)}")
    g(f"v_add_u32 {vr(t2)}, s{sT+3}, {vr(t2)}"); g(f"v_subrev_u32 {vr(t2)}, 54, {vr(t2)}")
    g(f"buffer_load_ushort {vr(hd)}, {vr(t2)}, {sr(sH,4)}, 0 offen")
    for i in range(4): g(f"v_mov_b32 {vr(zz+i)}, 0")
    g(f"v_mul_u32_u24 {vr(t2)}, {HST}, {vr(vHI)}"); g(f"v_add_u32 {vr(t2)}, s{sT+2}, {vr(t2)}"); g(f"v_add_u32 {vr(t2)}, {LH}, {vr(t2)}")
    t3 = va(1)
    g(f"v_min_u32 {vr(t3)}, 20, {vr(t)}"); g(f"v_lshl_add_u32 {vr(t3)}, {vr(t3)}, 4, {vr(t2)}")
    g(f"ds_write_b128 {vr(t3)}, {vr(zz,4)}")
    g(f"v_mul_u32_u24 {vr(t3)}, {XRST}, {vr(vHI)}"); g(f"v_lshl_add_u32 {vr(t3)}, {vr(vC8)}, 4, {vr(t3)}"); g(f"v_add_u32 {vr(t3)}, {LXR + 4096}, {vr(t3)}")
    g(f"ds_write_b128 {vr(t3)}, {vr(zz,4)}")
    g(f"v_lshl_add_u32 {vr(t2)}, {vr(t)}, 1, {vr(t2)}")
    g(f"ds_write_b16 {vr(t2)}, {vr(hd)} offset:336")
    va.free(hd, zz, t3)

    vTRa = va(1); vTRb = va(1)
    g(f"v_lshrrev_b32 {vr(t)}, 3, {vr(vN16)}"); g(f"v_lshlrev_b32 {vr(t)}, 6, {vr(t)}")
    g(f"v_and_b32 {vr(t2)}, 1, {vr(vKG)}"); g(f"v_lshl_add_u32 {vr(t)}, {vr(t2)}, 5, {vr(t)}")
    g(f"v_and_b32 {vr(t2)}, 3, v0"); g(f"v_lshl_add_u32 {vr(t)}, {vr(t2)}, 3, {vr(t)}")
    g(f"v_lshrrev_b32 {vr(t2)}, 2, {vr(vN16)}"); g(f"v_lshl_add_u32 {vr(t)}, {vr(t2)}, 7, {vr(t)}")
    vW2a = va(1); vW2b = va(1)
    g(f"v_lshl_add_u32 {vr(vW2a)}, {vr(vHI)}, 10, {vr(t)}")
    g(f"s_and_b32 s{sT}, s{sW}, 1"); g(f"s_mul_i32 s{sT}, s{sT}, {4096 + 64}")
    g(f"v_xor_b32 {vr(vW2a)}, s{sT}, {vr(vW2a)}"); g(f"v_xor_b32 {vr(vW2b)}, 64, {vr(vW2a)}")
    sRING = 3
    g(f"s_mul_i32 s{sRING}, s{sW}, {14*1024}"); g(f"s_add_u32 s{sRING}, s{sRING}, {LW}")
    g(f"v_lshl_add_u32 {vr(vTRa)}, {vr(vHI)}, 9, {vr(t)}"); g(f"v_add_u32 {vr(vTRa)}, s{sRING}, {vr(vTRa)}")
    g(f"v_xor_b32 {vr(vTRb)}, 64, {vr(vTRa)}")
    vT4a = va(1); vT4b = va(1)
    g(f"s_lshl_b32 s{sT}, s{sW}, 5")
    g(f"v_xor_b32 {vr(vT4a)}, s{sT}, {vr(vTRa)}"); g(f"v_xor_b32 {vr(vT4b)}, 64, {vr(vT4a)}")
    sS3, sS4 = 24, 25
    g.wait_lg(0)
    g(f"s_lshl_b32 s{sS3}, s{sJ}, 9"); g(f"s_lshl_b32 s{sT}, s{sW}, 7"); g(f"s_add_u32 s{sS3}, s{sS3}, s{sT}")
    g(f"s_mul_i32 s{sS4}, s{sJ}, {256*ROWB + 128}"); g(f"s_mul_i32 s{sT}, s{sW}, {64*ROWB}"); g(f"s_add_u32 s{sS4}, s{sS4}, s{sT}")
    class Ring:
        issued = 0; moved = 0; dma = {}; rd = {}
    W3A = lambda s: 8 * s
    W4A = lambda s: 8 * ((28 + s) % 32)
    def ring_issue():
        i = Ring.issued
        if i >= 112: return
        assert i - 14 < Ring.moved
        if i >= 14: g.wait(Ring.rd[i - 14])
        g(f"s_add_u32 m0, s{sRING}, {1024 * (i % 14)}")
        if i < 56:
            if i: g(f"s_add_u32 s{sS3}, s{sS3}, {8 * F * 2}")
            Ring.dma[i] = g(f"buffer_load_dwordx4 {vr(vT32w3)}, {sr(sW3,4)}, s{sS3} offen lds")
        else:
            q = i - 56
            if q and q % 8 == 0:
                g(f"s_add_u32 s{sS4}, s{sS4}, {(256 - 56) * ROWB}")
                g(f"s_sub_u32 s{sT+8}, s{sS4}, {F * ROWB}"); g(f"s_cselect_b32 s{sS4}, s{sS4}, s{sT+8}")
            elif q: g(f"s_add_u32 s{sS4}, s{sS4}, {8 * ROWB}")
            Ring.dma[i] = g(f"buffer_load_dwordx4 {vr(vT32)}, {sr(sW4,4)}, s{sS4} offen lds")
        Ring.issued += 1
    def ring_move():
        i = Ring.moved
        assert i < Ring.issued
        g.wait(Ring.dma[i])
        s, z = divmod(i % 56, 2)
        base = (W3A(s) if i < 56 else W4A(s)) + 2 * z
        a0, a1 = (vTRa, vTRb) if i < 56 else (vT4a, vT4b)
        g(f"ds_read_b64_tr_b16 {ar(base,2)}, {vr(a0)} offset:{1024*(i%14)}")
        Ring.rd[i] = g(f"ds_read_b64_tr_b16 {ar(base+4,2)}, {vr(a1)} offset:{1024*(i%14)}")
        Ring.moved += 1
    def pump(upto_moved, ahead=14):
        while Ring.moved < upto_moved:
            while Ring.issued < min(112, Ring.moved + ahead - 2): ring_issue()
            ring_move()
        while Ring.issued < min(112, Ring.moved + ahead): ring_issue()

    g(f"s_lshl_b32 s{sT}, s{sJ}, 2"); g(f"s_lshr_b32 s{sT+1}, s{sRB}, 3"); g(f"s_add_u32 s{sT}, s{sT}, s{sT+1}")
    g(f"s_lshl_b32 s{sT}, s{sT}, 7"); g(f"s_add_u32 s{sT}, s{sT}, {FL_KV}"); g(f"s_mov_b32 s{sT+1}, -1")
    poll(sT, sT + 1)
    g(f"s_lshl_b32 s{sT}, s{sJ}, 5"); g(f"s_add_u32 s{sT}, s{sT}, s{sRB}"); g(f"s_lshl_b32 s{sT}, s{sT}, 13")
    g(f"s_lshl_b32 s{sT+1}, s{sW}, 11"); g(f"s_add_u32 s{sT}, s{sT}, s{sT+1}"); g(f"s_add_u32 s{sT}, s{sT}, {WS_KV}")
    g(f"s_lshr_b32 s{sT+2}, s{sW}, 1"); g(f"s_lshl_b32 s{sT+3}, s{sT+2}, 7"); g(f"s_add_u32 s{sT+1}, s{sT+1}, s{sT+3}")
    kx = va(8)
    for i in range(2): g(f"buffer_load_dwordx4 {vr(kx+4*i,4)}, {vr(vL16)}, {sr(sWS,4)}, s{sT} offen offset:{1024*i} sc1")
    g(f"v_add_u32 {vr(t)}, s{sT+1}, {vr(vL16)}"); g(f"v_add_u32 {vr(t)}, {LXR}, {vr(t)}")
    for i in range(2): g(f"ds_write_b128 {vr(t)}, {vr(kx+4*i,4)} offset:{1024*i}")
    va.free(kx)
    pump(0)
    g.wait(hw2, hh); g.wait_lg(0); g.barrier()
    stamp("cvin")
    w2r = va(112)
    for p in range(7):
        for z in range(2):
            for ct in range(2):
                for y in range(2):
                    g(f"ds_read_b64_tr_b16 {vr(w2r + ((p*2+z)*2+ct)*4 + 2*y, 2)}, {vr((vW2a,vW2b)[ct])} offset:{LX + 8192*p + 2048*z + 512*y}")
    va.free(vW2a, vW2b)
    cA = va(1); cB = va(1)
    g(f"s_mul_i32 s{sT}, s{sT+2}, {4*HST}"); g(f"s_and_b32 s{sT+1}, s{sW}, 1"); g(f"s_lshl_b32 s{sT+1}, s{sT+1}, 8")
    g(f"s_add_u32 s{sT}, s{sT}, s{sT+1}"); g(f"s_add_u32 s{sT}, s{sT}, {LH}")
    g(f"v_and_b32 {vr(t)}, 3, v0"); g(f"v_mul_u32_u24 {vr(t)}, {HST}, {vr(t)}")
    g(f"v_lshrrev_b32 {vr(t2)}, 2, {vr(vN16)}"); g(f"v_lshl_add_u32 {vr(t)}, {vr(t2)}, 7, {vr(t)}")
    g(f"v_lshl_add_u32 {vr(t)}, {vr(vKG)}, 4, {vr(t)}"); g(f"v_add_u32 {vr(cA)}, s{sT}, {vr(t)}")
    g(f"s_mul_i32 s{sT}, s{sT+2}, {XRST}"); g(f"s_add_u32 s{sT}, s{sT}, s{sT+1}"); g(f"s_add_u32 s{sT}, s{sT}, {LXR + 120}")
    g(f"v_lshlrev_b32 {vr(t)}, 4, {vr(vKG)}"); g(f"v_lshlrev_b32 {vr(t2)}, 3, {vr(vN16)}"); g(f"v_sub_u32 {vr(t)}, {vr(t)}, {vr(t2)}")
    g(f"v_add_u32 {vr(cB)}, s{sT}, {vr(t)}")
    ca = va(32); opA = va(32); opB = va(32)
    for s in range(4):
        for m in range(8):
            g(f"ds_read_b128 {vr(opA+4*m,4)}, {vr(cA)} offset:{512*m + 64*s}")
            g(f"ds_read_b64 {vr(opB+4*m,2)}, {vr(cB)} offset:{512*(7-m) + 64*s}")
            g(f"ds_read_b64 {vr(opB+4*m+2,2)}, {vr(cB)} offset:{512*(7-m) + 64*s + 8}")
        seen = set()
        for d in range(8):
            pairs = [(m, d) for m in range(d + 1) if m + d <= 7] + [(d, c) for c in range(d) if c + d <= 7]
            for (m, c) in pairs:
                q = m + c
                first = s == 0 and q not in seen
                seen.add(q)
                g(f"v_mfma_f32_16x16x32_bf16 {vr(ca+4*q,4)}, {vr(opA+4*m,4)}, {vr(opB+4*c,4)}, {0 if first else vr(ca+4*q,4)}")
    va.free(opA, opB, cA, cB)
    g.wait_lg(0); g.barrier()
    g(f"s_lshl_b32 s{sT}, s{sW}, 13"); g(f"s_add_u32 s{sT}, s{sT}, {LH}")
    g(f"v_add_u32 {vr(t)}, s{sT}, {vr(vL16)}")
    for q in range(8): g(f"ds_write_b128 {vr(t)}, {vr(ca+4*q,4)} offset:{1024*q}")
    kvv = va(8)
    g(f"s_lshl_b32 s{sT}, s{sW}, 10"); g(f"s_sub_u32 s{sT}, {LXR + 4088 - 512}, s{sT}")
    g(f"v_lshlrev_b32 {vr(t2)}, 3, v0"); g(f"v_sub_u32 {vr(t2)}, s{sT}, {vr(t2)}")
    for c in range(2):
        for qq in range(2): g(f"ds_read_b64 {vr(kvv+4*c+2*qq,2)}, {vr(t2)} offset:{XRST*c + 512*(1-qq)}")
    g.wait_lg(0); g.barrier()
    g(f"s_lshl_b32 s{sT}, s{sW}, 11"); g(f"s_add_u32 s{sT}, s{sT}, {LH}")
    g(f"v_add_u32 {vr(t)}, s{sT}, {vr(vL16)}")
    for u in range(4):
        for qq in range(2): g(f"ds_read_b128 {vr(ca+8*u+4*qq,4)}, {vr(t)} offset:{8192*u + 1024*qq}")
    g(f"s_lshl_b32 s{sT+1}, s{sDD}, 16"); g(f"s_and_b32 s{sT+2}, s{sDD}, 0xffff0000")
    yo = va(8)
    for c in range(2):
        for i in range(0, 8, 2): g(f"v_pk_add_f32 {vr(ca+16*c+i,2)}, {vr(ca+16*c+i,2)}, {vr(ca+16*c+8+i,2)}")
        for qq in range(2):
            for r in range(4):
                src = kvv + 4*c + 2*qq + (3 - r) // 2
                if (3 - r) & 1: g(f"v_and_b32 {vr(t2)}, 0xffff0000, {vr(src)}")
                else: g(f"v_lshlrev_b32 {vr(t2)}, 16, {vr(src)}")
                g(f"v_fmac_f32 {vr(ca+16*c+4*qq+r)}, s{sT+1+c}, {vr(t2)}")
    for i in range(8): g(f"v_cvt_pk_bf16_f32 {vr(yo+i)}, {vr(ca+i)}, {vr(ca+16+i)}")
    g(f"s_lshl_b32 s{sT}, s{sJ}, 5"); g(f"s_add_u32 s{sT}, s{sT}, s{sRB}"); g(f"s_lshl_b32 s{sT}, s{sT}, 13")
    g(f"s_lshl_b32 s{sT+1}, s{sW}, 11"); g(f"s_add_u32 s{sT}, s{sT}, s{sT+1}"); g(f"s_add_u32 s{sT}, s{sT}, {WS_Y}")
    hy = [g(f"buffer_store_dwordx4 {vr(yo+4*qq,4)}, {vr(vL16)}, {sr(sWS,4)}, s{sT} offen offset:{1024*qq} sc1") for qq in range(2)]
    g(f"s_lshl_b32 s{sT}, s{sJ}, 2"); g(f"s_add_u32 s{sT}, s{sT}, s{sW}"); g(f"s_lshl_b32 s{sT}, s{sT}, 7")
    g(f"s_lshl_b32 s{sT+1}, s{sRB}, 2"); g(f"s_add_u32 s{sT}, s{sT}, s{sT+1}"); g(f"s_add_u32 s{sT}, s{sT}, {FL_Y}")
    flag(sT, hy)
    va.free(ca, kvv, yo)
    stamp("conv")

    g(f"s_lshl_b32 s{sT}, s{sRB}, 7"); g(f"s_and_b32 s{sT+2}, s{sW}, 1"); g(f"s_lshl_b32 s{sT+3}, s{sT+2}, 1")
    g(f"s_lshl_b32 s{sT+1}, 0x3333333, s{sT+3}")
    poll(sT, sT + 1)
    gf = va(56); acc = va(32)
    g(f"s_mul_i32 s{sT}, s{sRB}, {56*1024}"); g(f"s_lshl_b32 s{sT+1}, s{sT+2}, 12"); g(f"s_add_u32 s{sT}, s{sT}, s{sT+1}")
    g(f"s_lshr_b32 s{sT+4}, s{sW}, 1"); g(f"s_lshl_b32 s{sT+1}, s{sT+4}, 10"); g(f"s_add_u32 s{sT}, s{sT}, s{sT+1}")
    g(f"s_add_u32 s{sT+5}, s{sT}, {WS_G}")
    for p in range(7):
        if p: g(f"s_add_u32 s{sT+5}, s{sT+5}, 8192")
        for z in range(2): g(f"buffer_load_dwordx4 {vr(gf+4*(2*p+z),4)}, {vr(vL16)}, {sr(sWS,4)}, s{sT+5} offen offset:{2048*z} sc1")
    g(f"s_lshl_b32 s{sT+1}, s{sJ}, 13"); g(f"s_add_u32 s{sT}, s{sT}, s{sT+1}"); g(f"s_add_u32 s{sT}, s{sT}, {WS_X1}")
    for i in range(14):
        for ct in (1, 0):
            g(f"v_mfma_f32_32x32x16_bf16 {vr(acc+16*ct,16)}, {vr(w2r+(2*i+ct)*4,4)}, {vr(gf+4*i,4)}, {vr(acc+16*ct,16) if i else 0}")
    va.free(w2r, gf)
    g(f"s_xor_b32 s{sT+1}, s{sW}, 1"); g(f"s_lshl_b32 s{sT+1}, s{sT+1}, 12"); g(f"v_add_u32 {vr(t)}, s{sT+1}, {vr(vL16)}")
    for a in range(4): g(f"ds_write_b128 {vr(t)}, {vr(acc+16+4*a,4)} offset:{LX + 1024*a}")
    xn = va(16)
    for i in range(8):
        g(f"v_lshlrev_b32 {vr(xn+2*i)}, 16, {vr(xg+i)}"); g(f"v_and_b32 {vr(xn+2*i+1)}, 0xffff0000, {vr(xg+i)}")
    for i in range(0, 16, 2): g(f"v_pk_add_f32 {vr(xn+i,2)}, {vr(xn+i,2)}, {vr(xgs,2)} op_sel_hi:[1,0] neg_lo:[0,1] neg_hi:[0,1]")
    for i in range(0, 16, 2): g(f"v_pk_fma_f32 {vr(acc+i,2)}, {vr(xn+i,2)}, {vr(xgs,2)}, {vr(acc+i,2)} op_sel:[0,1,0] op_sel_hi:[1,1,1]")
    va.free(xg, xgs)
    g(f"v_xor_b32 {vr(t)}, 4096, {vr(t)}")
    g.wait_lg(0); g.barrier()
    for a in range(4): g(f"ds_read_b128 {vr(acc+16+4*a,4)}, {vr(t)} offset:{LX + 1024*a}")
    for i in range(0, 16, 2): g(f"v_pk_add_f32 {vr(acc+i,2)}, {vr(acc+i,2)}, {vr(acc+16+i,2)}")
    xo = va(8)
    for i in range(8): g(f"v_cvt_pk_bf16_f32 {vr(xo+i)}, {vr(acc+2*i)}, {vr(acc+2*i+1)}")
    hx1 = [g(f"buffer_store_dwordx4 {vr(xo+4*z,4)}, {vr(vL16)}, {sr(sWS,4)}, s{sT} offen offset:{2048*z} sc1") for z in range(2)]
    ps = va(4)
    g(f"v_pk_add_f32 {vr(xn,2)}, {vr(acc,2)}, {vr(acc+2,2)}"); g(f"v_pk_mul_f32 {vr(xn+2,2)}, {vr(acc,2)}, {vr(acc,2)}")
    g(f"v_pk_fma_f32 {vr(xn+2,2)}, {vr(acc+2,2)}, {vr(acc+2,2)}, {vr(xn+2,2)}")
    for i in range(4, 16, 2):
        g(f"v_pk_add_f32 {vr(xn,2)}, {vr(xn,2)}, {vr(acc+i,2)}"); g(f"v_pk_fma_f32 {vr(xn+2,2)}, {vr(acc+i,2)}, {vr(acc+i,2)}, {vr(xn+2,2)}")
    g(f"v_add_f32 {vr(ps)}, {vr(xn)}, {vr(xn+1)}"); g(f"v_add_f32 {vr(ps+1)}, {vr(xn+2)}, {vr(xn+3)}")
    g(f"v_mov_b32 {vr(ps+2)}, {vr(ps)}"); g(f"v_mov_b32 {vr(ps+3)}, {vr(ps+1)}")
    g(f"v_permlane32_swap_b32 {vr(ps)}, {vr(ps+2)}"); g(f"v_permlane32_swap_b32 {vr(ps+1)}, {vr(ps+3)}")
    g(f"v_pk_add_f32 {vr(ps,2)}, {vr(ps,2)}, {vr(ps+2,2)}")
    vL8 = va(1)
    g(f"v_lshlrev_b32 {vr(vL8)}, 3, v0")
    g(f"s_lshl_b32 s{sT}, s{sRB}, 13"); g(f"s_lshl_b32 s{sT+1}, s{sT+4}, 12"); g(f"s_add_u32 s{sT}, s{sT}, s{sT+1}")
    g(f"s_lshl_b32 s{sT+1}, s{sJ}, 9"); g(f"s_add_u32 s{sT}, s{sT}, s{sT+1}")
    g(f"s_lshl_b32 s{sT+1}, s{sT+2}, 8"); g(f"s_add_u32 s{sT}, s{sT}, s{sT+1}"); g(f"s_add_u32 s{sT}, s{sT}, {WS_ST}")
    g("s_mov_b32 exec_hi, 0")
    hx1.append(g(f"buffer_store_dwordx2 {vr(ps,2)}, {vr(vL8)}, {sr(sWS,4)}, s{sT} offen sc1"))
    g("s_mov_b32 exec_hi, -1")
    g(f"s_add_u32 s{sT}, s{sFL}, {FL_X1}")
    flag(sT, hx1)
    va.free(acc, xn, xo, ps)
    stamp("x1flag")
    pump(56 + 8)
    stamp("w3in")

    g(f"s_lshl_b32 s{sT}, s{sRB}, 7"); g(f"s_add_u32 s{sT}, s{sT}, {FL_X1}"); g(f"s_mov_b32 s{sT+1}, 0xfffffff")
    poll(sT, sT + 1)
    xr = va(56); sp = va(28)
    g(f"s_lshl_b32 s{sT}, s{sRB}, 13"); g(f"s_add_u32 s{sT}, s{sT}, {WS_ST}")
    g(f"s_mul_i32 s{sT+1}, s{sRB}, {56*1024}"); g(f"s_lshl_b32 s{sT+2}, s{sW}, 11"); g(f"s_add_u32 s{sT+1}, s{sT+1}, s{sT+2}")
    g(f"s_add_u32 s{sT+1}, s{sT+1}, {WS_X1}")
    for tt in range(2):
        if tt: g(f"s_add_u32 s{sT}, s{sT}, 4096")
        for p in range(7): g(f"buffer_load_dwordx2 {vr(sp+14*tt+2*p,2)}, {vr(vL8)}, {sr(sWS,4)}, s{sT} offen offset:{512*p} sc1")
        g(f"s_lshl_b32 s{sT+3}, s{sJ}, 13")
        for pp in range(7):
            if pp:
                g(f"s_add_u32 s{sT+3}, s{sT+3}, 8192"); g(f"s_cmp_eq_u32 s{sT+3}, {7*8192}"); g(f"s_cselect_b32 s{sT+3}, 0, s{sT+3}")
            g(f"s_add_u32 s{sT+4}, s{sT+3}, s{sT+1}")
            g(f"buffer_load_dwordx4 {vr(xr+28*tt+4*pp,4)}, {vr(vL16)}, {sr(sWS,4)}, s{sT+4} offen offset:{1024*tt} sc1")
    va.free(vL8)
    u = va(8); mr = va(2); x1k = va(8)
    g.barrier()
    for tt in range(2):
        b = sp + 14 * tt
        for p in range(1, 7): g(f"v_pk_add_f32 {vr(b,2)}, {vr(b,2)}, {vr(b+2*p,2)}")
        g(f"v_mov_b32 {vr(b+2)}, {vr(b)}"); g(f"v_mov_b32 {vr(b+3)}, {vr(b+1)}")
        g(f"v_permlane32_swap_b32 {vr(b)}, {vr(b+2)}"); g(f"v_permlane32_swap_b32 {vr(b+1)}, {vr(b+3)}")
        g(f"v_pk_add_f32 {vr(b,2)}, {vr(b,2)}, {vr(b+2,2)}")
        g(f"v_mul_f32 {vr(b)}, {hex(f2u(1.0/D))}, {vr(b)}"); g(f"v_mul_f32 {vr(b+1)}, {hex(f2u(1.0/D))}, {vr(b+1)}")
        g(f"v_fma_f32 {vr(b+1)}, -{vr(b)}, {vr(b)}, {vr(b+1)}"); g(f"v_max_f32 {vr(b+1)}, 0, {vr(b+1)}")
        g(f"v_add_f32 {vr(b+1)}, {hex(f2u(EPS))}, {vr(b+1)}"); g(f"v_rsq_f32 {vr(mr)}, {vr(b+1)}")
        g(f"v_mul_f32 {vr(mr+1)}, {vr(b)}, {vr(mr)}")
        g(f"s_lshl_b32 s{sT+3}, s{sJ}, 13")
        for pp in range(7):
            f = xr + 28 * tt + 4 * pp
            if pp:
                g(f"s_add_u32 s{sT+3}, s{sT+3}, 8192"); g(f"s_cmp_eq_u32 s{sT+3}, {7*8192}"); g(f"s_cselect_b32 s{sT+3}, 0, s{sT+3}")
            g(f"s_add_u32 s{sT+4}, s{sT+3}, s{sT+2}")
            for i in range(4):
                g(f"v_lshlrev_b32 {vr(u+2*i)}, 16, {vr(f+i)}"); g(f"v_and_b32 {vr(u+2*i+1)}, 0xffff0000, {vr(f+i)}")
                if pp == 0: g(f"v_mov_b32 {vr(x1k+4*tt+i)}, {vr(f+i)}")
            for i in range(4): g(f"v_pk_fma_f32 {vr(u+2*i,2)}, {vr(u+2*i,2)}, {vr(mr,2)}, {vr(mr,2)} op_sel:[0,0,1] op_sel_hi:[1,0,1] neg_lo:[0,0,1] neg_hi:[0,0,1]")
            g(f"v_add_u32 {vr(t)}, s{sT+4}, {vr(vL16)}")
            for i in range(4): g(f"v_cvt_pk_bf16_f32 {vr(f+i)}, {vr(u+2*i)}, {vr(u+2*i+1)}")
            g(f"ds_write_b128 {vr(t)}, {vr(f,4)} offset:{LX + 1024*tt}")
    va.free(xr, sp, u, mr)
    g.wait_lg(0); g.barrier()
    stamp("ln2")
    h2o = va(32); fb = va(16)
    g(f"s_mul_i32 s{sT}, s{sRB}, {224*1024}"); g(f"s_lshl_b32 s{sT+1}, s{sW}, 12"); g(f"s_add_u32 s{sT}, s{sT}, s{sT+1}")
    sH2 = 100
    g(f"s_add_u32 s{sH2}, s{sT}, {WS_H2}")
    for tt in range(2):
        acc = va(32)
        def rdf(s): g(f"ds_read_b128 {vr(fb+4*(s%4),4)}, {vr(vL16)} offset:{LX + 2048*s + 1024*tt}")
        for s in range(3): rdf(s)
        for s in range(28):
            if s + 3 < 28: rdf(s + 3)
            for ft in range(2):
                g(f"v_mfma_f32_32x32x16_bf16 {vr(acc+16*ft,16)}, {ar(W3A(s)+4*ft,4)}, {vr(fb+4*(s%4),4)}, {vr(acc+16*ft,16) if s else 0}")
        gelu_pk(acc, 32, h2o + 16 * tt)
        va.free(acc)
        g(f"s_lshl_b32 s{sT}, s{sJ}, 14"); g(f"s_add_u32 s{sT}, s{sT}, s{sH2}")
        if tt: g(f"s_add_u32 s{sT}, s{sT}, {112*1024}")
        hs = [g(f"buffer_store_dwordx4 {vr(h2o+16*tt+4*z,4)}, {vr(vL16)}, {sr(sWS,4)}, s{sT} offen offset:{1024*z} sc1") for z in range(4)]
        g(f"s_add_u32 s{sT}, s{sFL}, {(FL_H2A, FL_H2B)[tt]}")
        flag(sT, hs)
    va.free(fb)
    stamp("g3")
    pump(112)
    g(f"s_lshl_b32 s{sT}, s{sJ}, 2"); g(f"s_lshr_b32 s{sT+1}, s{sRB}, 3"); g(f"s_add_u32 s{sT}, s{sT}, s{sT+1}")
    g(f"s_lshl_b32 s{sT}, s{sT}, 7"); g(f"s_add_u32 s{sT}, s{sT}, {FL_Y}")
    g(f"s_lshl_b32 s{sT+2}, s{sW}, 3"); g(f"s_lshl_b32 s{sT+1}, 0xff, s{sT+2}")
    poll(sT, sT + 1)
    yv = va(8); base = va(16)
    g(f"s_lshl_b32 s{sT}, s{sJ}, 5"); g(f"s_add_u32 s{sT}, s{sT}, s{sT+2}"); g(f"s_lshl_b32 s{sT}, s{sT}, 13")
    g(f"s_lshl_b32 s{sT+1}, s{sRB}, 8"); g(f"s_add_u32 s{sT}, s{sT}, s{sT+1}"); g(f"s_add_u32 s{sT}, s{sT}, {WS_Y}")
    g(f"v_lshlrev_b32 {vr(t)}, 14, {vr(vHI)}"); g(f"v_lshl_add_u32 {vr(t)}, {vr(vTOK)}, 2, {vr(t)}")
    for i in range(4):
        g(f"s_add_u32 s{sT+1}, s{sT}, {8192 * (4 * (i >> 1) + (i & 1))}")
        for tt in range(2): g(f"buffer_load_dword {vr(yv+4*tt+i)}, {vr(t)}, {sr(sWS,4)}, s{sT+1} offen offset:{128*tt} sc1")
    u = va(8); u2 = va(8)
    for tt in range(2):
        for i in range(4):
            g(f"v_lshlrev_b32 {vr(u+2*i)}, 16, {vr(xf+4*tt+i)}"); g(f"v_and_b32 {vr(u+2*i+1)}, 0xffff0000, {vr(xf+4*tt+i)}")
            g(f"v_lshlrev_b32 {vr(u2+2*i)}, 16, {vr(x1k+4*tt+i)}"); g(f"v_and_b32 {vr(u2+2*i+1)}, 0xffff0000, {vr(x1k+4*tt+i)}")
        for i in range(0, 8, 2): g(f"v_pk_add_f32 {vr(base+8*tt+i,2)}, {vr(u+i,2)}, {vr(u2+i,2)}")
        for i in range(0, 8, 2): g(f"v_pk_add_f32 {vr(u+i,2)}, {vr(u+i,2)}, {vr(xfs+2*tt,2)} op_sel_hi:[1,0] neg_lo:[0,1] neg_hi:[0,1]")
        for i in range(0, 8, 2): g(f"v_pk_mul_f32 {vr(u+i,2)}, {vr(u+i,2)}, {vr(xfs+2*tt,2)} op_sel:[0,1] op_sel_hi:[1,1]")
        for i in range(4):
            g(f"v_lshlrev_b32 {vr(u2+2*i)}, 16, {vr(yv+4*tt+i)}"); g(f"v_and_b32 {vr(u2+2*i+1)}, 0xffff0000, {vr(yv+4*tt+i)}")
        for i in range(0, 8, 2): g(f"v_pk_fma_f32 {vr(base+8*tt+i,2)}, {vr(u+i,2)}, {vr(u2+i,2)}, {vr(base+8*tt+i,2)}")
    va.free(yv, u, u2, xf, xfs, x1k)
    vOA = va(1)
    g(f"v_mul_u32_u24 {vr(vOA)}, {ROWB}, {vr(vTOK)}"); g(f"v_lshl_add_u32 {vr(vOA)}, {vr(vHI)}, 4, {vr(vOA)}")
    stamp("w4in")
    hf = va(96)
    for tt in range(2):
        g(f"s_lshl_b32 s{sT}, s{sRB}, 7"); g(f"s_add_u32 s{sT}, s{sT}, {(FL_H2A, FL_H2B)[tt]}"); g(f"s_lshl_b32 s{sT+1}, 0x1111111, s{sW}")
        poll(sT, sT + 1)
        g(f"s_lshl_b32 s{sT+3}, s{sJ}, 14")
        for pp in range(1, 7):
            g(f"s_add_u32 s{sT+3}, s{sT+3}, 16384"); g(f"s_cmp_eq_u32 s{sT+3}, {7*16384}"); g(f"s_cselect_b32 s{sT+3}, 0, s{sT+3}")
            g(f"s_add_u32 s{sT+4}, s{sT+3}, s{sH2}")
            if tt: g(f"s_add_u32 s{sT+4}, s{sT+4}, {112*1024}")
            for z in range(4): g(f"buffer_load_dwordx4 {vr(hf+16*(pp-1)+4*z,4)}, {vr(vL16)}, {sr(sWS,4)}, s{sT+4} offen offset:{1024*z} sc1")
        acc = va(32)
        for s in range(28):
            bop = vr(h2o + 16*tt + 4*s, 4) if s < 4 else vr(hf + 4*(s-4), 4)
            for ct in range(2):
                g(f"v_mfma_f32_32x32x16_bf16 {vr(acc+16*ct,16)}, {ar(W4A(s)+4*ct,4)}, {bop}, {vr(acc+16*ct,16) if s else 0}")
        RED = LC + 0 if tt == 0 else LX
        for q in range(1, 4):
            g(f"s_xor_b32 s{sT}, s{sW}, {q}"); g(f"s_mul_i32 s{sT}, s{sT}, 6144"); g(f"s_add_u32 s{sT}, s{sT}, {RED + 2048*(q-1)}")
            g(f"v_add_u32 {vr(t)}, s{sT}, {vr(vL16)}")
            for a in range(2): g(f"ds_write_b128 {vr(t)}, {vr(acc+8*q+4*a,4)} offset:{1024*a}")
        g(f"s_mul_i32 s{sT}, s{sW}, 6144"); g(f"s_add_u32 s{sT}, s{sT}, {RED}"); g(f"v_add_u32 {vr(t)}, s{sT}, {vr(vL16)}")
        for i in range(0, 8, 2): g(f"v_pk_add_f32 {vr(acc+i,2)}, {vr(acc+i,2)}, {vr(base+8*tt+i,2)}")
        g.wait_lg(0); g.barrier()
        for a in range(6): g(f"ds_read_b128 {vr(acc+8+4*a,4)}, {vr(t)} offset:{1024*a}")
        for q in range(1, 4):
            for i in range(0, 8, 2): g(f"v_pk_add_f32 {vr(acc+i,2)}, {vr(acc+i,2)}, {vr(acc+8*q+i,2)}")
        for i in range(4): g(f"v_cvt_pk_bf16_f32 {vr(acc+8+i)}, {vr(acc+2*i)}, {vr(acc+2*i+1)}")
        for i in range(2): g(f"v_permlane32_swap_b32 {vr(acc+8+i)}, {vr(acc+10+i)}")
        g(f"s_mul_i32 s{sT}, s{sRB}, {64*ROWB}"); g(f"s_lshl_b32 s{sT+1}, s{sJ}, 7"); g(f"s_add_u32 s{sT}, s{sT}, s{sT+1}")
        g(f"s_lshl_b32 s{sT+1}, s{sW}, 5"); g(f"s_add_u32 s{sT}, s{sT}, s{sT+1}")
        if tt: g(f"s_add_u32 s{sT}, s{sT}, {32*ROWB}")
        g(f"buffer_store_dwordx4 {vr(acc+8,4)}, {vr(vOA)}, {sr(sO,4)}, s{sT} offen")
        va.free(acc)
    stamp("end")
    if ts:
        g.wait_vm(0)
        g("s_nop 4")
        for i in range(nts[0]): g(f"v_writelane_b32 {vr(t)}, s{sTS+2*i}, {i}")
        g(f"s_lshl_b32 s{sT}, s2, 2"); g(f"s_add_u32 s{sT}, s{sT}, s{sW}"); g(f"s_lshl_b32 s{sT}, s{sT}, 7"); g(f"s_add_u32 s{sT}, s{sT}, {WS_TS}")
        g(f"v_lshlrev_b32 {vr(t2)}, 2, v0")
        g("s_mov_b64 exec, 0xffff")
        g(f"buffer_store_dword {vr(t)}, {vr(t2)}, {sr(sWS,4)}, s{sT} offen")
    g("s_endpgm")

    g.label("L_spare")
    g.restore(spare_snap)
    g("s_cmp_eq_u32 s2, 224"); g("s_cbranch_scc0 L_exit")
    g(f"s_cmp_eq_u32 s{sW}, 0"); g("s_cbranch_scc0 L_exit")
    g(f"v_mov_b32 v1, {FL_E}")
    g(f"buffer_load_dword v2, v1, {sr(sWS,4)}, 0 offen sc1")
    g("v_lshrrev_b32 v3, 3, v0"); g("v_min_u32 v3, 6, v3"); g("v_lshlrev_b32 v3, 9, v3")
    g("v_and_b32 v4, 7, v0"); g("v_lshl_add_u32 v3, v4, 4, v3"); g(f"v_add_u32 v3, {FL_KV}, v3")
    g(f"v_readfirstlane_b32 s{sEP}, v2")
    g(f"s_mul_i32 s{sEP}, s{sEP}, 0x9e3779b1"); g(f"s_add_u32 s{sEP}, s{sEP}, 0x7f4a7c15")
    g(f"v_mov_b32 v2, s{sEP}"); g(f"s_mov_b32 s{sT}, 0")
    with g.loop() as l:
        g("s_sleep 16")
        g(f"buffer_load_dwordx4 v[8:11], v3, {sr(sWS,4)}, 0 offen sc1")
        g(f"s_add_u32 s{sT}, s{sT}, 1")
        for i in range(4): g(f"v_xor_b32 v{8+i}, v{8+i}, v2")
        g("v_or3_b32 v8, v8, v9, v10"); g("v_or_b32 v8, v8, v11")
        g("v_cmp_ne_u32 vcc, 0, v8")
        g(f"s_cmp_eq_u64 vcc, 0")
        g(f"s_cselect_b32 s{sT}, 0x40000, s{sT}")
        g(f"s_cmp_lt_u32 s{sT}, 0x40000")
        g(f"s_cbranch_scc1 {l}")
    g("s_mov_b64 exec, 1")
    g(f"buffer_store_dword v2, v1, {sr(sWS,4)}, 0 offen sc1")
    g.label("L_exit")
    g("s_endpgm")
    hdr = open("parallel_sum__ssm_conv_h3__mixer_s_mlp__prompt.s.ref").read().split("; Override launch")[0]
    text = hdr + HEAD.format(launch=f"; @launch grid=(256,1,1) block=(256,1,1) lds={LDS_SIZE}") + kernel_text(NAME, g.text(), 512, 256)
    return text, g, va

STAMPS = []
if __name__ == "__main__":
    ts = "--ts" in sys.argv
    out = [a for a in sys.argv[1:] if not a.startswith("--")]
    text, g, va = build(ts)
    path = out[0] if out else "parallel_sum__ssm_conv_h3__mixer_s_mlp__prompt.s"
    open(path, "w").write(text)
    print("instructions", g.stats, "vgpr high water", va.hw, "stamps", STAMPS)
```
